```python
import torch

def _softmax(x, axis=-1):
    return torch.softmax(x, dim=axis)
def _gelu(x):
    return torch.nn.functional.gelu(x, approximate="tanh")
def _silu(x):
    return torch.nn.functional.silu(x)
def _sigmoid(x):
    return torch.sigmoid(x)
def _layernorm(x, axis=-1, eps=1e-5):
    m = x.mean(dim=axis, keepdim=True)
    v = x.var(dim=axis, keepdim=True, unbiased=False)
    return (x - m) / torch.sqrt(v + eps)
def _scatter_add(tgt, idx, src, axis=0):
    return tgt.clone().index_add_(axis, idx, src)
def _segment_sum(src, seg, n):
    out = torch.zeros((n,) + src.shape[1:], dtype=src.dtype)
    return out.index_add_(0, seg, src)
def _pad(x, pw):
    flat = tuple(v for pair in reversed(pw) for v in pair)
    return torch.nn.functional.pad(x, flat)

kernel_name = 'standalone__gqa_block_cached__sampling'

def setup_inputs():

    _w = (lambda a: (lambda t: t.to(torch.bfloat16) if t.is_floating_point() else t)(torch.as_tensor(a)))
    B, Sq, D = 32, 8, 512
    Hq, Hkv, Sk, Dh = 32, 8, 2048, 128
    assert Hq % Hkv == 0, (Hq, Hkv)
    return {
        "x": _w((lambda *s: torch.randn(*s, dtype=torch.bfloat16) * 0.8)(B, Sq, D)),
        "k_cache": _w((lambda *s: torch.randn(*s, dtype=torch.bfloat16) * 0.8)(B, Hkv, Sk, Dh)),
        "v_cache": _w((lambda *s: torch.randn(*s, dtype=torch.bfloat16) * 0.05)(B, Hkv, Sk, Dh)),
        "wq": _w((lambda *s: torch.randn(*s, dtype=torch.bfloat16) * 0.8)(D, Hq * Dh) * (D ** -0.5)),
        "wo": _w((lambda *s: torch.randn(*s, dtype=torch.bfloat16) * 0.05)(Hq * Dh, D) * ((Hq * Dh) ** -0.5)),
    }

def reference(x, k_cache, v_cache, wq, wo):
    B, Sq, D = x.shape
    Hq, Dh = 32, 128
    Hkv = k_cache.shape[1]
    rep = Hq // Hkv
    q = (lambda x, *d: x.permute(*d))((x @ wq).reshape(B, Sq, Hq, Dh), 0, 2, 1, 3)
    k = (lambda x, n, axis: torch.repeat_interleave(x, n, dim=axis))(k_cache, rep, axis=1)
    v = (lambda x, n, axis: torch.repeat_interleave(x, n, dim=axis))(v_cache, rep, axis=1)
    scores = torch.einsum("bhqd,bhkd->bhqk", q, k) * (Dh ** -0.5)
    p = _softmax(scores, axis=-1)
    o = torch.einsum("bhqk,bhkd->bhqd", p, v)
    return (lambda x, *d: x.permute(*d))(o, 0, 2, 1, 3).reshape(B, Sq, Hq * Dh) @ wo
```

```python
import sys, math, struct, json
from asmlib import *

KN = "standalone__gqa_block_cached__sampling_kernel"
QF = 0
OF = 2 << 20
FQ = 4 << 20
FO = (4 << 20) + (64 << 10)
EP = (4 << 20) + (128 << 10)
WSN = (4 << 20) + (256 << 10)
TS = 8 << 20
CSCALE = math.log2(math.e) / math.sqrt(128.0)
RING = 40960
P = [0, 8192, 16384, 24576, 32768]
SL_KA, SL_VA, SL_KB, SL_VB, SL_W = P[0], P[3], P[1], P[2], P[4]

def f32(x):
    return "0x%08x" % struct.unpack("<I", struct.pack("<f", x))[0]

class VM:
    def __init__(self, A): self.A = A; self.ops = []
    def add(self, tag, n=1): self.ops += [tag] * n
    def after(self, tag):
        idx = max(i for i, t in enumerate(self.ops) if t == tag)
        return len(self.ops) - 1 - idx
    def wait(self, tag):
        n = min(63, self.after(tag))
        self.A(f"s_waitcnt vmcnt({n})")
        return n

def gen(cfg):
    A = Asm()
    vm = VM(A)
    ST = cfg.get("stamps", 0)
    kvf = cfg.get("kv_flags", "nt")
    TMO = cfg.get("timeout", 400000)
    PACE = cfg.get("pace", 1)
    hdr = HEADER + f"; @launch grid=(256,1,1) block=(256,1,1) lds={4*RING}\n.amdgcn_target \"amdgcn-amd-amdhsa--gfx950\"\n"
    kernel_begin(A, KN)

    sWG, sW = 2, 3
    SK, SV, SX, SWQ, SWO, SWS, SOUT = 20, 24, 28, 32, 36, 40, 44
    sRB, sKo, sVo, sWo, sT0, sT1, sT2, sC, sNon, sState, sTmo, sJ = 48, 49, 50, 51, 52, 53, 54, 55, 56, 57, 58, 59
    sChunk, sRb16, sCb32, sT3 = 60, 61, 62, 63
    sSt0 = 64
    sQo = 80
    vLane = 0
    vQ, vO, vS, vK, vV, vP = 16, 48, 112, 128, 160, 192
    vDA = 200
    vKA = 204
    vVA = 212
    vWD = 220
    vWT = 221
    vPoll, vPollA = 223, 224
    vM, vL, vT0, vT1, vT2, vAl, vMC = 226, 227, 228, 229, 230, 231, 232
    vDX = 233
    vWQD = 237
    vWQT = 238
    vL16 = 240

    def stamp(i):
        if not ST: return
        A(f"s_memrealtime s[90:91]\ns_waitcnt lgkmcnt(0)\ns_mov_b32 s{sSt0+i}, s90")

    def srd(sb, lo, hi, nbytes, off=None):
        if off is None:
            A(f"s_mov_b32 s{sb}, s{lo}\ns_mov_b32 s{sb+1}, s{hi}")
        else:
            A(f"s_add_u32 s{sb}, s{lo}, {off}\ns_addc_u32 s{sb+1}, s{hi}, 0")
        A(f"s_mov_b32 s{sb+2}, {nbytes}\ns_mov_b32 s{sb+3}, 0x20000")

    L_end = "L_end"
    A(f"""
    s_cmp_ge_u32 s2, 256
    s_cbranch_scc1 {L_end}
    s_load_dwordx16 s[4:19], s[0:1], 0
    v_lshrrev_b32 v1, 6, v0
    v_and_b32 v0, 63, v0
    s_nop 0
    v_readfirstlane_b32 s{sW}, v1
    s_and_b32 s{sT0}, s2, 7                 ; x
    s_lshr_b32 s{sT1}, s2, 3                ; j
    s_lshl_b32 s{sChunk}, s{sT0}, 5
    s_add_u32 s{sChunk}, s{sChunk}, s{sT1}
    s_mul_i32 s{sRB}, s{sW}, {RING}
    """)
    XR = cfg.get("xr", 8)
    lr = XR.bit_length() - 1
    ngr = 16 // XR
    lg = ngr.bit_length() - 1
    A(f"""
    s_and_b32 s{sT2}, s{sT0}, {ngr-1}       ; xr
    s_lshl_b32 s{sRb16}, s{sT2}, {lr}
    s_and_b32 s{sT2}, s{sT1}, {XR-1}
    s_add_u32 s{sRb16}, s{sRb16}, s{sT2}
    s_lshr_b32 s{sCb32}, s{sT0}, {lg}       ; xc
    s_lshl_b32 s{sCb32}, s{sCb32}, {5-lr}
    s_lshr_b32 s{sT2}, s{sT1}, {lr}
    s_add_u32 s{sCb32}, s{sCb32}, s{sT2}
    """)
    if ST:
        for i in range(16): A(f"s_mov_b32 s{sSt0+i}, 0")
    A(f"""
    v_lshrrev_b32 v2, 4, v0
    v_lshlrev_b32 v3, 2, v2
    v_and_b32 v4, 15, v0
    v_xor_b32 v3, v3, v4
    v_lshlrev_b32 v5, 8, v2
    v_mul_u32_u24 v7, 768, v2
    """)
    for n in range(4):
        A(f"v_xor_b32 v6, {n}, v3\nv_lshlrev_b32 v6, 4, v6\nv_add_u32 v{vDA+n}, v5, v6\nv_add_u32 v{vDX+n}, v7, v{vDA+n}")
    A(f"""
    s_mul_i32 s{sKo}, s2, 0x9E3779B1
    s_lshr_b32 s{sKo}, s{sKo}, 26
    s_add_u32 s{sKo}, s{sKo}, s{sW}
    s_lshl_b32 s{sKo}, s{sKo}, 13
    s_and_b32 s{sKo}, s{sKo}, 0x7ffff
    s_mov_b32 s{sVo}, s{sKo}
    s_lshl_b32 s{sT3}, s{sChunk}, 19
    s_waitcnt lgkmcnt(0)
    """)
    stamp(0)
    srd(SK, 6, 7, 0x80000, off=f"s{sT3}")
    srd(SV, 8, 9, 0x80000, off=f"s{sT3}")

    def kv_group(which, slot, half):
        sb, so = (SK, sKo) if which == "K" else (SV, sVo)
        A(f"s_add_u32 m0, s{sRB}, {slot + half*4096}")
        if half == 0:
            o = f"s{so}"
            A("s_nop 0")
        else:
            A(f"s_add_u32 s{sT3}, s{so}, 4096")
            o = f"s{sT3}"
        for n in range(4):
            A(f"buffer_load_dwordx4 v{vDA+n}, s[{sb}:{sb+3}], {o} offen offset:{n*1024} {kvf} lds")
        if half == 1:
            A(f"s_add_u32 s{so}, s{so}, 32768\ns_and_b32 s{so}, s{so}, 0x7ffff")
    def kv_item(which, slot, tag=None):
        kv_group(which, slot, 0); kv_group(which, slot, 1)
        if tag: vm.add(tag, 8)

    srd(SWQ, 10, 11, 4 << 20)
    srd(SX, 4, 5, 256 * 1024)
    ROT = cfg.get("qrot", 1)
    A(f"""
    s_mov_b32 s81, {EP}
    s_load_dword s{sNon}, s[18:19], s81
    v_lshrrev_b32 v2, 3, v0
    v_lshlrev_b32 v2, 13, v2
    v_bfe_u32 v3, v0, 4, 1
    v_lshlrev_b32 v3, 2, v3
    v_and_b32 v4, 7, v0
    v_xor_b32 v3, v3, v4
    v_lshlrev_b32 v3, 4, v3
    v_add_u32 v{vWQD}, v2, v3
    s_and_b32 s{sT1}, s2, 7
    s_lshl_b32 s{sT1}, s{sT1}, 3
    s_bfe_u32 s{sT2}, s2, 0x30003         ; j&7
    s_add_u32 s{sT1}, s{sT1}, s{sT2}       ; cb64
    s_lshl_b32 s{sT1}, s{sT1}, 7
    s_lshl_b32 s{sT2}, s{sW}, 20
    s_add_u32 s82, s{sT1}, s{sT2}
    s_lshr_b32 s{sT0}, s2, 6               ; rb4
    s_lshl_b32 s84, s{sT0}, 2
    s_lshl_b32 s{sT0}, s{sT0}, 16
    s_lshl_b32 s{sT2}, s{sW}, 8
    s_add_u32 s83, s{sT0}, s{sT2}
    s_bfe_u32 s85, s2, 0x30003
    s_lshl_b32 s85, s85, 1
    s_and_b32 s85, s85, 12
    s_add_u32 s86, s{sKo}, 4096
    """)
    if not ROT:
        A("s_mov_b32 s84, 0\ns_mov_b32 s85, 0")
    KP = cfg.get("k0pos", [])
    for n in range(16):
        if n in KP:
            pc = KP.index(n)
            A(f"s_add_u32 m0, s{sRB}, {P[2] + (pc >> 2)*4096}\ns_nop 0")
            A(f"buffer_load_dwordx4 v{vDA+(pc&3)}, s[{SK}:{SK+3}], s{sKo if pc < 4 else 86} offen offset:{(pc&3)*1024} {kvf} lds"); vm.add("K0")
        A(f"""
        s_lshl_b32 s{sT0}, s84, 10
        s_add_u32 s{sT0}, s{sT0}, {P[3]}
        s_add_u32 m0, s{sRB}, s{sT0}
        s_lshl_b32 s{sT1}, s84, 16
        s_add_u32 s{sT1}, s{sT1}, s82
        buffer_load_dwordx4 v{vWQD}, s[{SWQ}:{SWQ+3}], s{sT1} offen lds
        s_add_u32 s84, s84, 1
        s_and_b32 s84, s84, 15
        s_lshl_b32 s{sT0}, s85, 10
        s_add_u32 m0, s{sRB}, s{sT0}
        s_lshl_b32 s{sT1}, s85, 12
        s_add_u32 s{sT1}, s{sT1}, s83
        buffer_load_dwordx4 v{vDX+(n&3)}, s[{SX}:{SX+3}], s{sT1} offen lds
        s_add_u32 s85, s85, 1
        s_and_b32 s85, s85, 15
        """)
        vm.add("WQ"); vm.add("X")
    if KP:
        A(f"s_add_u32 s{sKo}, s{sKo}, 32768\ns_and_b32 s{sKo}, s{sKo}, 0x7ffff")
    else:
        kv_item("K", P[2], "K0")
    stamp(1)
    A(f"""
    v_lshlrev_b32 v{vL16}, 4, v0
    v_and_b32 v2, 31, v0
    v_lshrrev_b32 v3, 5, v0
    v_and_b32 v4, 3, v2
    v_lshlrev_b32 v4, 2, v4
    v_bfe_u32 v5, v2, 2, 2
    v_or_b32 v4, v4, v5
    v_xor_b32 v4, v4, v3
    v_lshlrev_b32 v4, 4, v4
    v_lshlrev_b32 v5, 8, v2
    v_add_u32 v4, v4, v5
    """)
    for s_ in range(8):
        A(f"v_xor_b32 v5, {32*s_}, v4\nv_add_u32 v{vKA+s_}, s{sRB}, v5")
    A(f"""
    v_bfe_u32 v4, v0, 2, 2
    v_lshlrev_b32 v5, 2, v3
    v_add_u32 v5, v5, v4
    v_lshlrev_b32 v5, 8, v5
    v_lshlrev_b32 v6, 6, v4
    v_add_u32 v5, v5, v6
    v_bfe_u32 v6, v0, 4, 1
    v_lshlrev_b32 v6, 1, v6
    v_bfe_u32 v8, v0, 1, 1
    v_or_b32 v6, v6, v8
    v_xor_b32 v6, v6, v3
    v_lshlrev_b32 v6, 4, v6
    v_add_u32 v5, v5, v6
    v_and_b32 v6, 1, v0
    v_lshlrev_b32 v6, 3, v6
    v_add_u32 v5, v5, v6
    """)
    for dt in range(4):
        for eh in range(2):
            A(f"v_xor_b32 v6, {(dt << 6) ^ (eh << 5)}, v5\nv_add_u32 v{vVA+dt*2+eh}, s{sRB}, v6")
    A(f"""
    v_lshlrev_b32 v5, 10, v3
    v_lshlrev_b32 v6, 7, v4
    v_add_u32 v5, v5, v6
    v_lshrrev_b32 v6, 1, v4
    v_lshlrev_b32 v6, 6, v6
    v_add_u32 v5, v5, v6
    v_bfe_u32 v6, v0, 4, 1
    v_lshlrev_b32 v6, 5, v6
    v_add_u32 v5, v5, v6
    v_and_b32 v6, 3, v0
    v_lshlrev_b32 v6, 3, v6
    v_add_u32 v5, v5, v6
    v_add_u32 v{vWQT}, s{sRB}, v5
    v_xor_b32 v{vWQT+1}, 64, v{vWQT}
    """)
    def k_reads(dst, pfx, slot):
        for s_ in range(8):
            A(f"ds_read_b128 {pfx}[{dst+4*s_}:{dst+4*s_+3}], v{vKA+s_} offset:{slot}")
    def v_reads(dst, pfx, slot):
        for dt in range(4):
            for s2 in range(2):
                for eh in range(2):
                    b = dst + (dt*2+s2)*4 + eh*2
                    A(f"ds_read_b64_tr_b16 {pfx}[{b}:{b+1}], v{vVA+dt*2+eh} offset:{slot + 4096*s2 + 2048*eh}")
    A(f"s_waitcnt vmcnt({vm.after('X')})")
    stamp(2)
    for rh in range(2):
        for s_ in range(8):
            A(f"ds_read_b128 a[{128+rh*32+4*s_}:{128+rh*32+4*s_+3}], v{vKA+s_} offset:{P[0]+rh*8192}")
    for ch in range(2):
        for s_ in range(8):
            for eh in range(2):
                b_ = 64 + ch*32 + s_*4 + eh*2
                A(f"ds_read_b64_tr_b16 a[{b_}:{b_+1}], v{vWQT+ch} offset:{P[3] + s_*2048 + eh*512}")
    A("s_waitcnt lgkmcnt(0)")
    stamp(3)
    kv_item("V", P[0], "V0")
    for s_ in range(8):
        for rh in range(2):
            for ch in range(2):
                t = ch + 2*rh
                d = f"a[{t*16}:{t*16+15}]"
                c = "0" if s_ == 0 else d
                A(f"v_mfma_f32_32x32x16_bf16 {d}, a[{64+ch*32+s_*4}:{64+ch*32+s_*4+3}], a[{128+rh*32+s_*4}:{128+rh*32+s_*4+3}], {c}")
    A(f"""
    v_lshrrev_b32 v2, 2, v0
    v_lshlrev_b32 v2, 10, v2
    v_bfe_u32 v5, v0, 5, 1
    v_lshlrev_b32 v5, 1, v5
    v_and_b32 v6, 3, v0
    v_xor_b32 v5, v5, v6
    v_lshlrev_b32 v5, 4, v5
    v_add_u32 v{vWD}, v2, v5
    v_lshrrev_b32 v2, 4, v0
    v_lshlrev_b32 v5, 9, v2
    v_bfe_u32 v6, v0, 2, 2
    v_lshlrev_b32 v6, 6, v6
    v_add_u32 v5, v5, v6
    v_bfe_u32 v6, v0, 1, 1
    v_and_b32 v7, 1, v2
    v_lshlrev_b32 v7, 1, v7
    v_xor_b32 v6, v6, v7
    v_lshlrev_b32 v6, 4, v6
    v_add_u32 v5, v5, v6
    v_and_b32 v6, 1, v0
    v_lshlrev_b32 v6, 3, v6
    v_add_u32 v5, v5, v6
    v_add_u32 v{vWT}, s{sRB}, v5
    v_xor_b32 v{vWT+1}, 32, v{vWT}
    v_add_u32 v9, s{sRB}, v{vL16}
    s_lshl_b32 s{sWo}, s{sW}, 20
    s_lshl_b32 s{sT0}, s{sCb32}, 6
    s_add_u32 s{sWo}, s{sWo}, s{sT0}
    """)
    srd(SWO, 12, 13, 4 << 20)
    srd(SWS, 18, 19, WSN)
    for t in range(4):
        for g in range(4):
            A(f"ds_write_b128 v9, a[{t*16+g*4}:{t*16+g*4+3}] offset:{P[3] + (t*4+g)*1024}")
    A(f"""
    s_lshl_b32 s{sT0}, s{sW}, 12
    s_add_u32 s{sT0}, s{sT0}, {P[3]}
    v_add_u32 v9, s{sT0}, v{vL16}
    v_add_u32 v10, {2*RING}, v9
    s_waitcnt lgkmcnt(0)
    s_barrier
    """)
    stamp(4)
    R = vO
    for ww in range(4):
        for g in range(4):
            A(f"ds_read_b128 v[{R+ww*16+g*4}:{R+ww*16+g*4+3}], v{9 if ww < 2 else 10} offset:{(ww&1)*RING + g*1024}")
    A(f"""
    s_and_b32 s{sT0}, s{sW}, 1               ; ch
    s_lshr_b32 s{sT1}, s{sW}, 1              ; rh
    s_lshr_b32 s{sT2}, s2, 6                 ; rb4
    s_lshl_b32 s{sT2}, s{sT2}, 3
    s_lshl_b32 s{sT1}, s{sT1}, 2
    s_add_u32 s{sT2}, s{sT2}, s{sT1}         ; b base
    s_lshl_b32 s{sT2}, s{sT2}, 3
    s_and_b32 s{sT1}, s2, 7
    s_add_u32 s{sT2}, s{sT2}, s{sT1}
    s_lshl_b32 s{sT2}, s{sT2}, 13
    s_bfe_u32 s{sT1}, s2, 0x10003            ; cb64&1 = j&1
    s_lshl_b32 s{sT1}, s{sT1}, 2
    s_lshl_b32 s{sT0}, s{sT0}, 1
    s_add_u32 s{sT1}, s{sT1}, s{sT0}
    s_lshl_b32 s{sT1}, s{sT1}, 10
    s_add_u32 s{sT2}, s{sT2}, s{sT1}
    s_bfe_u32 s{sT1}, s2, 0x20004
    s_lshl_b32 s{sT1}, s{sT1}, 7
    s_add_u32 s{sT2}, s{sT2}, s{sT1}
    s_add_u32 s{sT2}, s{sT2}, {QF}
    v_bfe_u32 v12, v0, 3, 2
    v_lshlrev_b32 v12, 16, v12
    v_and_b32 v13, 7, v0
    v_lshlrev_b32 v13, 4, v13
    v_add_u32 v12, v12, v13
    v_lshrrev_b32 v13, 5, v0
    v_lshlrev_b32 v13, 9, v13
    v_add_u32 v12, v12, v13
    s_waitcnt lgkmcnt(0)
    """)
    for i in range(16):
        A(f"v_add_f32 v{R+i}, v{R+i}, v{R+16+i}\nv_add_f32 v{R+32+i}, v{R+32+i}, v{R+48+i}")
    for i in range(16):
        A(f"v_add_f32 v{R+i}, v{R+i}, v{R+32+i}")
    for g in range(4):
        A(f"v_cvt_pk_bf16_f32 v{vP+2*g}, v{R+4*g}, v{R+4*g+1}\nv_cvt_pk_bf16_f32 v{vP+2*g+1}, v{R+4*g+2}, v{R+4*g+3}")
    A("s_nop 1")
    A(f"v_permlane32_swap_b32 v{vP}, v{vP+2}\nv_permlane32_swap_b32 v{vP+1}, v{vP+3}\nv_permlane32_swap_b32 v{vP+4}, v{vP+6}\nv_permlane32_swap_b32 v{vP+5}, v{vP+7}")
    A(f"buffer_store_dwordx4 v[{vP}:{vP+3}], v12, s[{SWS}:{SWS+3}], s{sT2} offen sc1")
    A(f"buffer_store_dwordx4 v[{vP+4}:{vP+7}], v12, s[{SWS}:{SWS+3}], s{sT2} offen offset:1024 sc1")
    vm.add("QST", 2)
    stamp(5)
    vm.wait("K0")
    k_reads(vK, "v", P[2])
    A("s_waitcnt lgkmcnt(0)")
    kv_item("K", P[1], "K1")
    kv_item("V", P[2], "V1")
    vm.wait("V0")
    v_reads(vV, "v", P[0])
    A(f"""
    s_waitcnt lgkmcnt(0)
    s_mul_i32 s{sNon}, s{sNon}, 0x9E3779B1
    s_add_u32 s{sNon}, s{sNon}, 0x7F4A7C15
    s_and_b32 s{sT0}, s{sChunk}, 7           ; hkv
    s_lshr_b32 s{sT1}, s{sChunk}, 6          ; b>>3
    s_lshl_b32 s{sT1}, s{sT1}, 6
    s_add_u32 s{sT0}, s{sT0}, s{sT1}
    s_lshl_b32 s{sT0}, s{sT0}, 7
    s_add_u32 s{sT0}, s{sT0}, {FQ}
    v_and_b32 v2, 7, v0
    v_lshlrev_b32 v2, 10, v2                 ; c*8*128
    v_add_u32 v{vPollA}, s{sT0}, v2
    s_lshl_b32 s{sQo}, s{sChunk}, 13
    s_add_u32 s{sQo}, s{sQo}, {QF}
    s_mov_b32 s{sState}, 0
    s_mov_b32 s{sC}, {f32(CSCALE)}
    """)
    vm.wait("QST")
    A("s_barrier")
    L = A.newlabel("noflag")
    A(f"""
    s_cmp_lg_u32 s{sW}, 0
    s_cbranch_scc1 {L}
    s_lshl_b32 s{sT0}, s2, 7
    s_add_u32 s{sT0}, s{sT0}, {FQ}
    v_mov_b32 v2, s{sT0}
    v_mov_b32 v3, s{sNon}
    s_mov_b64 exec, 1
    buffer_store_dword v3, v2, s[{SWS}:{SWS+3}], 0 offen sc1
    s_mov_b64 exec, -1
    {L}:
    """)
    stamp(6)
    def q_loads():
        A(f"s_add_u32 s{sT2}, s{sQo}, 4096")
        for s_ in range(8):
            A(f"buffer_load_dwordx4 v[{vQ+4*s_}:{vQ+4*s_+3}], v{vL16}, s[{SWS}:{SWS+3}], s{sQo if s_ < 4 else sT2} offen offset:{(s_&3)*1024} sc1")
    def step(issue, tag, G=8):
        l1, l2, l3 = A.newlabel("np"), A.newlabel("st1"), A.newlabel("nx")
        if PACE:
            A(f"s_cmp_lg_u32 s{sState}, 0\ns_cbranch_scc1 {l1}")
            A(f"buffer_load_dword v{vPoll}, v{vPollA}, s[{SWS}:{SWS+3}], 0 offen sc1")
            A(f"{l1}:")
        issue(); vm.add(tag, G)
        if PACE:
            A(f"""
            s_cmp_eq_u32 s{sState}, 2
            s_cbranch_scc1 {l3}
            s_waitcnt vmcnt({G})
            s_cmp_eq_u32 s{sState}, 1
            s_cbranch_scc1 {l2}
            v_cmp_ne_u32 vcc, s{sNon}, v{vPoll}
            s_cbranch_vccnz {l3}
            """)
            q_loads()
            A(f"s_mov_b32 s{sState}, 1\ns_branch {l3}\n{l2}:\ns_mov_b32 s{sState}, 2\n{l3}:")
    WMODE = cfg.get("wmode", "")
    def w_group(slot, half):
        for n in range(4):
            A(f"s_add_u32 m0, s{sRB}, {slot + (half*4+n)*1024}\ns_nop 0")
            if WMODE == "skip":
                A(f"buffer_load_dwordx4 v{vL16}, s[{SWO}:{SWO+3}], 0 offen lds")
            elif WMODE == "fake":
                A(f"s_lshr_b32 s{sT3}, s{sWo}, 4\ns_and_b32 s{sT3}, s{sT3}, 0xffffff80")
                A(f"buffer_load_dwordx4 v{vL16}, s[{SWO}:{SWO+3}], s{sT3} offen lds")
            else:
                A(f"buffer_load_dwordx4 v{vWD}, s[{SWO}:{SWO+3}], s{sWo} offen {WMODE} lds")
            A(f"s_add_u32 s{sWo}, s{sWo}, 16384")
    PG = cfg.get("pace_g", 8)
    def steps(fn, tag):
        if PG == 8: step(lambda: (fn(0), fn(1)), tag, 8)
        else: step(lambda: fn(0), tag, 4); step(lambda: fn(1), tag, 4)
    steps(lambda h: kv_group("K", SL_KA, h), "K2")
    vm.wait("K1")
    k_reads(192, "a", P[1])
    steps(lambda h: kv_group("V", SL_VA, h), "V2")
    A("s_waitcnt lgkmcnt(0)")
    steps(lambda h: kv_group("K", SL_KB, h), "K3")
    stamp(7)
    lq, lp, ld_ = A.newlabel("qdone"), A.newlabel("qpoll"), A.newlabel("qwait")
    A(f"""
    s_cmp_eq_u32 s{sState}, 2
    s_cbranch_scc1 {lq}
    s_cmp_eq_u32 s{sState}, 1
    s_cbranch_scc1 {ld_}
    s_mov_b32 s{sTmo}, {TMO}
    {lp}:
    buffer_load_dword v{vPoll}, v{vPollA}, s[{SWS}:{SWS+3}], 0 offen sc1
    s_sub_u32 s{sTmo}, s{sTmo}, 1
    s_cmp_eq_u32 s{sTmo}, 0
    s_cbranch_scc1 {L_end}
    s_waitcnt vmcnt(0)
    v_cmp_ne_u32 vcc, s{sNon}, v{vPoll}
    s_cbranch_vccnz {lp}
    """)
    q_loads()
    A(f"{ld_}:\ns_waitcnt vmcnt(0)\n{lq}:")
    stamp(8)
    A(f"v_mov_b32 v{vM}, 0xff800000\nv_mov_b32 v{vL}, 0")
    for i in range(64):
        A(f"v_mov_b32 v{vO+i}, 0")

    def s_mfma(pfx, kb, ladder):
        for s_ in range(8):
            if ladder: A(f"s_waitcnt lgkmcnt({7-s_})")
            c = "0" if s_ == 0 else f"v[{vS}:{vS+15}]"
            A(f"v_mfma_f32_32x32x16_bf16 v[{vS}:{vS+15}], {pfx}[{kb+4*s_}:{kb+4*s_+3}], v[{vQ+4*s_}:{vQ+4*s_+3}], {c}")
    def softmax():
        A(f"v_max3_f32 v{vT0}, v{vS}, v{vS+1}, v{vS+2}")
        for i in range(3, 15, 2):
            A(f"v_max3_f32 v{vT0}, v{vT0}, v{vS+i}, v{vS+i+1}")
        A(f"""
        v_max_f32 v{vT0}, v{vT0}, v{vS+15}
        v_mov_b32 v{vT1}, v{vT0}
        s_nop 1
        v_permlane32_swap_b32 v{vT0}, v{vT1}
        s_nop 1
        v_max3_f32 v{vT0}, v{vT0}, v{vT1}, v{vM}
        v_sub_f32 v{vAl}, v{vM}, v{vT0}
        v_mul_f32 v{vAl}, s{sC}, v{vAl}
        v_exp_f32 v{vAl}, v{vAl}
        v_mul_f32 v{vMC}, s{sC}, v{vT0}
        v_mov_b32 v{vM}, v{vT0}
        """)
        for i in range(16):
            A(f"v_fma_f32 v{vS+i}, v{vS+i}, s{sC}, -v{vMC}")
        for i in range(16):
            A(f"v_exp_f32 v{vS+i}, v{vS+i}")
        A(f"v_mul_f32 v{vL}, v{vL}, v{vAl}")
        for i in range(64):
            A(f"v_mul_f32 v{vO+i}, v{vO+i}, v{vAl}")
        for i in range(16):
            A(f"v_add_f32 v{vL}, v{vL}, v{vS+i}")
        for i in range(8):
            A(f"v_cvt_pk_bf16_f32 v{vP+i}, v{vS+2*i}, v{vS+2*i+1}")
    def pv_mfma(pfx, vb, ladder):
        for dt in range(4):
            for s2 in range(2):
                if ladder: A(f"s_waitcnt lgkmcnt({min(15, 16 - 2*(dt*2+s2+1))})")
                b = vb + (dt*2+s2)*4
                A(f"v_mfma_f32_32x32x16_bf16 v[{vO+16*dt}:{vO+16*dt+15}], {pfx}[{b}:{b+3}], v[{vP+4*s2}:{vP+4*s2+3}], v[{vO+16*dt}:{vO+16*dt+15}]")
    def tile_regs(pfx, kb, vb):
        s_mfma(pfx, kb, False)
        A("s_nop 7\ns_nop 3")
        softmax()
        A("s_nop 1")
        pv_mfma(pfx, vb, False)
    def tile_lds(kslot, vslot, wk, wv, after_k, after_v):
        A(f"s_waitcnt vmcnt({wk})")
        k_reads(vK, "v", kslot)
        s_mfma("v", vK, True)
        if after_k: after_k()
        else: A("s_nop 7\ns_nop 3")
        softmax()
        A(f"s_waitcnt vmcnt({wv})")
        v_reads(vV, "v", vslot)
        pv_mfma("v", vV, True)
        if after_v: after_v()

    vm.wait("V1")
    v_reads(224, "a", P[2])
    A("s_waitcnt lgkmcnt(0)")
    kv_item("V", SL_VB, "V3")
    tile_regs("v", vK, vV)
    w_group(SL_W, 0); w_group(SL_W, 1); vm.add("W0", 8)
    tile_regs("a", 192, 224)
    stamp(9)
    def w_reads(jj, slot):
        for ks in range(4):
            for ct in range(2):
                for eh in range(2):
                    ab = (jj*4+ks)*8 + ct*4 + eh*2
                    A(f"ds_read_b64_tr_b16 a[{ab}:{ab+1}], v{vWT+ct} offset:{slot + ks*2048 + eh*256}")
    A(f"s_mov_b32 s{sJ}, 0")
    Lloop = "L_main"
    A.label(Lloop)
    tile_lds(SL_KA, SL_VA, 32, 32, lambda: kv_item("K", SL_KA), lambda: kv_item("V", SL_VA))
    tile_lds(SL_KB, SL_VB, 32, 32, lambda: kv_item("K", SL_KB), lambda: kv_item("V", SL_VB))
    A("s_waitcnt vmcnt(32)")
    Lw = [f"L_wsn{j}" for j in range(6)]
    Lwd = "L_wsn_done"
    for j in range(5):
        A(f"s_cmp_eq_u32 s{sJ}, {j}\ns_cbranch_scc1 {Lw[j]}")
    for j in (5, 0, 1, 2, 3, 4):
        A.label(Lw[j])
        w_reads(j, SL_W)
        if j != 4: A(f"s_branch {Lwd}")
    A.label(Lwd)
    A("s_waitcnt lgkmcnt(0)")
    w_group(SL_W, 0); w_group(SL_W, 1)
    A(f"s_add_u32 s{sJ}, s{sJ}, 1\ns_cmp_lt_u32 s{sJ}, 6\ns_cbranch_scc1 {Lloop}")
    stamp(10)
    def w7():
        w_group(SL_KA, 0); w_group(SL_KA, 1)
    tile_lds(SL_KA, SL_VA, 32, 32, w7, None)
    tile_lds(SL_KB, SL_VB, 24, 16, None, None)
    stamp(11)
    A(f"""
    v_mov_b32 v{vT1}, v{vL}
    s_nop 1
    v_permlane32_swap_b32 v{vL}, v{vT1}
    s_nop 1
    v_add_f32 v{vT1}, v{vL}, v{vT1}
    v_mov_b32 v{vT0}, v{vM}
    v_add_u32 v3, s{sRB}, v{vL16}
    v_lshlrev_b32 v4, 3, v0
    v_add_u32 v5, s{sRB}, v4
    s_nop 3
    """)
    for dt in range(4):
        for g in range(4):
            A(f"ds_write_b128 v3, v[{vO+16*dt+4*g}:{vO+16*dt+4*g+3}] offset:{P[1] + (dt*4+g)*1024}")
    A(f"ds_write_b64 v5, v[{vT0}:{vT0+1}] offset:{P[3]}")
    A(f"""
    s_lshl_b32 s{sT0}, s{sW}, 12
    v_add_u32 v3, s{sT0}, v{vL16}
    v_add_u32 v4, {P[3]}, v4
    v_add_u32 v8, {2*RING}, v4
    v_add_u32 v9, {2*RING}, v3
    s_waitcnt lgkmcnt(0)
    s_barrier
    """)
    R = 128
    for ww in range(4):
        A(f"ds_read_b64 v[{192+2*ww}:{193+2*ww}], v{4 if ww < 2 else 8} offset:{(ww&1)*RING}")
    for ww in range(4):
        for g in range(4):
            A(f"ds_read_b128 v[{R+ww*16+g*4}:{R+ww*16+g*4+3}], v{3 if ww < 2 else 9} offset:{(ww&1)*RING + P[1] + g*1024}")
    A(f"""
    s_lshr_b32 s{sT0}, s{sChunk}, 3          ; b
    s_and_b32 s{sT1}, s{sChunk}, 7           ; hkv
    s_lshr_b32 s{sT2}, s{sT0}, 1
    s_lshl_b32 s{sT2}, s{sT2}, 7
    s_lshl_b32 s{sT1}, s{sT1}, 4
    s_add_u32 s{sT2}, s{sT2}, s{sT1}
    s_add_u32 s{sT2}, s{sT2}, s{sW}
    s_lshl_b32 s{sT2}, s{sT2}, 10
    s_and_b32 s{sT0}, s{sT0}, 1
    s_lshl_b32 s{sT0}, s{sT0}, 7
    s_add_u32 s{sT2}, s{sT2}, s{sT0}
    s_add_u32 s{sT2}, s{sT2}, {OF}
    v_bfe_u32 v2, v0, 3, 2
    v_lshlrev_b32 v2, 12, v2
    v_and_b32 v10, 7, v0
    v_lshlrev_b32 v10, 4, v10
    v_add_u32 v2, v2, v10
    v_lshrrev_b32 v10, 5, v0
    v_lshlrev_b32 v10, 8, v10
    v_add_u32 v2, v2, v10
    s_waitcnt lgkmcnt(15)
    s_waitcnt lgkmcnt(0)
    v_max3_f32 v{vT0}, v192, v194, v196
    v_max_f32 v{vT0}, v{vT0}, v198
    """)
    for ww in range(4):
        A(f"v_sub_f32 v{200+ww}, v{192+2*ww}, v{vT0}\nv_mul_f32 v{200+ww}, s{sC}, v{200+ww}\nv_exp_f32 v{200+ww}, v{200+ww}")
    A("s_nop 0")
    A(f"v_mul_f32 v{vT1}, v200, v193")
    for ww in range(1, 4):
        A(f"v_fmac_f32 v{vT1}, v{200+ww}, v{193+2*ww}")
    A(f"v_rcp_f32 v{vT1}, v{vT1}\ns_nop 0")
    for ww in range(4):
        A(f"v_mul_f32 v{200+ww}, v{200+ww}, v{vT1}")
    for i in range(16):
        A(f"v_mul_f32 v{vS+i}, v200, v{R+i}")
    for ww in range(1, 4):
        for i in range(16):
            A(f"v_fmac_f32 v{vS+i}, v{200+ww}, v{R+ww*16+i}")
    for g in range(4):
        A(f"v_cvt_pk_bf16_f32 v{192+2*g}, v{vS+4*g}, v{vS+4*g+1}\nv_cvt_pk_bf16_f32 v{193+2*g}, v{vS+4*g+2}, v{vS+4*g+3}")
    A("s_nop 1")
    A("v_permlane32_swap_b32 v192, v194\nv_permlane32_swap_b32 v193, v195\nv_permlane32_swap_b32 v196, v198\nv_permlane32_swap_b32 v197, v199")
    A(f"buffer_store_dwordx4 v[192:195], v2, s[{SWS}:{SWS+3}], s{sT2} offen sc1")
    A(f"buffer_store_dwordx4 v[196:199], v2, s[{SWS}:{SWS+3}], s{sT2} offen offset:512 sc1")
    A(f"""
    s_lshl_b32 s{sT0}, s{sRb16}, 4
    s_lshl_b32 s{sT1}, s{sW}, 1
    s_add_u32 s{sT0}, s{sT0}, s{sT1}
    s_lshl_b32 s{sT0}, s{sT0}, 7
    s_add_u32 s{sT0}, s{sT0}, {FO}
    v_bfe_u32 v10, v0, 1, 1
    v_lshlrev_b32 v10, 10, v10               ; (c>>1)*8*128
    v_and_b32 v11, 1, v0
    v_lshlrev_b32 v11, 7, v11
    v_add_u32 v10, v10, v11
    v_add_u32 v{vPollA}, s{sT0}, v10
    s_waitcnt vmcnt(0)
    s_barrier
    """)
    L = A.newlabel("noflag")
    A(f"""
    s_cmp_lg_u32 s{sW}, 0
    s_cbranch_scc1 {L}
    s_lshl_b32 s{sT0}, s{sChunk}, 7
    s_add_u32 s{sT0}, s{sT0}, {FO}
    v_mov_b32 v2, s{sT0}
    v_mov_b32 v3, s{sNon}
    s_mov_b64 exec, 1
    buffer_store_dword v3, v2, s[{SWS}:{SWS+3}], 0 offen sc1
    s_mov_b64 exec, -1
    {L}:
    """)
    stamp(12)
    w_reads(6, SL_W)
    w_reads(7, SL_KA)
    lp = A.newlabel("opoll")
    A(f"""
    s_lshl_b32 s{sT0}, s{sRb16}, 7
    s_lshl_b32 s{sT1}, s{sW}, 5
    s_add_u32 s{sT0}, s{sT0}, s{sT1}
    s_lshl_b32 s{sT0}, s{sT0}, 10
    s_add_u32 s{sT0}, s{sT0}, {OF}
    s_mov_b32 s{sTmo}, {TMO}
    {lp}:
    buffer_load_dword v{vPoll}, v{vPollA}, s[{SWS}:{SWS+3}], 0 offen sc1
    s_sub_u32 s{sTmo}, s{sTmo}, 1
    s_cmp_eq_u32 s{sTmo}, 0
    s_cbranch_scc1 {L_end}
    s_waitcnt vmcnt(0)
    v_cmp_ne_u32 vcc, s{sNon}, v{vPoll}
    s_cbranch_vccnz {lp}
    """)
    stamp(13)
    OB = 64
    for ks in range(32):
        if ks and ks % 4 == 0: A(f"s_add_u32 s{sT0}, s{sT0}, 4096")
        A(f"buffer_load_dwordx4 v[{OB+4*ks}:{OB+4*ks+3}], v{vL16}, s[{SWS}:{SWS+3}], s{sT0} offen offset:{(ks&3)*1024} sc1")
    srd(SOUT, 14, 15, 256 * 1024)
    A("s_waitcnt lgkmcnt(0)")
    for ks in range(32):
        if ks % 2 == 0: A(f"s_waitcnt vmcnt({30-ks})")
        for ct in range(2):
            d = f"v[{16+4*ct}:{19+4*ct}]"
            c = "0" if ks == 0 else d
            A(f"v_mfma_f32_16x16x32_bf16 {d}, a[{ks*8+ct*4}:{ks*8+ct*4+3}], v[{OB+4*ks}:{OB+4*ks+3}], {c}")
    A(f"""
    v_add_u32 v11, s{sRB}, v{vL16}
    s_lshl_b32 s{sT0}, s{sW}, 10
    v_add_u32 v12, s{sT0}, v{vL16}
    v_add_u32 v13, {2*RING}, v12
    s_nop 4
    ds_write_b128 v11, v[16:19] offset:{P[1]}
    ds_write_b128 v11, v[20:23] offset:{P[1]+1024}
    s_waitcnt lgkmcnt(0)
    s_barrier
    """)
    stamp(14)
    Lfin = "L_fin"
    A(f"""
    s_cmp_ge_u32 s{sW}, 2
    s_cbranch_scc1 {Lfin}
    ds_read_b128 v[24:27], v12 offset:{P[1]}
    ds_read_b128 v[28:31], v12 offset:{RING+P[1]}
    ds_read_b128 v[32:35], v13 offset:{P[1]}
    ds_read_b128 v[36:39], v13 offset:{RING+P[1]}
    v_and_b32 v13, 15, v0
    s_lshl_b32 s{sT0}, s{sRb16}, 4
    v_add_u32 v13, s{sT0}, v13
    v_lshlrev_b32 v13, 10, v13
    v_lshrrev_b32 v14, 4, v0
    v_lshlrev_b32 v14, 3, v14
    v_add_u32 v13, v13, v14
    s_lshl_b32 s{sT0}, s{sCb32}, 6
    s_lshl_b32 s{sT1}, s{sW}, 5
    s_add_u32 s{sT0}, s{sT0}, s{sT1}
    s_waitcnt lgkmcnt(0)
    """)
    for i in range(4):
        A(f"v_add_f32 v{24+i}, v{24+i}, v{28+i}\nv_add_f32 v{32+i}, v{32+i}, v{36+i}")
    for i in range(4):
        A(f"v_add_f32 v{24+i}, v{24+i}, v{32+i}")
    A(f"""
    v_cvt_pk_bf16_f32 v24, v24, v25
    v_cvt_pk_bf16_f32 v25, v26, v27
    buffer_store_dwordx2 v[24:25], v13, s[{SOUT}:{SOUT+3}], s{sT0} offen
    """)
    le = A.newlabel("ep")
    A(f"""
    s_or_b32 s{sT0}, s2, s{sW}
    s_cmp_lg_u32 s{sT0}, 0
    s_cbranch_scc1 {Lfin}
    v_lshlrev_b32 v2, 7, v0
    v_add_u32 v2, {FQ}, v2
    v_add_u32 v3, 16384, v2
    s_mov_b32 s{sTmo}, {TMO}
    {le}:
    buffer_load_dword v4, v2, s[{SWS}:{SWS+3}], 0 offen sc1
    buffer_load_dword v5, v3, s[{SWS}:{SWS+3}], 0 offen sc1
    s_add_u32 s{sT0}, 8192, 0
    buffer_load_dword v6, v2, s[{SWS}:{SWS+3}], s{sT0} offen sc1
    buffer_load_dword v7, v3, s[{SWS}:{SWS+3}], s{sT0} offen sc1
    s_sub_u32 s{sTmo}, s{sTmo}, 1
    s_cmp_eq_u32 s{sTmo}, 0
    s_cbranch_scc1 {Lfin}
    s_waitcnt vmcnt(0)
    v_xor_b32 v4, s{sNon}, v4
    v_xor_b32 v5, s{sNon}, v5
    v_xor_b32 v6, s{sNon}, v6
    v_xor_b32 v7, s{sNon}, v7
    v_or_b32 v4, v4, v5
    v_or3_b32 v4, v4, v6, v7
    v_cmp_ne_u32 vcc, 0, v4
    s_cbranch_vccnz {le}
    v_mov_b32 v2, {EP}
    v_mov_b32 v3, s{sNon}
    s_mov_b64 exec, 1
    buffer_store_dword v3, v2, s[{SWS}:{SWS+3}], 0 offen sc1
    s_mov_b64 exec, -1
    {Lfin}:
    """)
    if ST:
        A("s_waitcnt vmcnt(0)")
        stamp(15)
        A(f"""
        s_lshl_b32 s90, s2, 2
        s_add_u32 s90, s90, s{sW}
        s_lshl_b32 s90, s90, 6
        s_add_u32 s90, s90, {TS}
        v_mov_b32 v1, 0
        """)
        for i in range(16):
            A(f"v_writelane_b32 v1, s{sSt0+i}, {i}")
        A(f"""
        v_lshlrev_b32 v3, 2, v0
        v_add_u32 v3, s90, v3
        v_cmp_gt_u32 vcc, 16, v0
        s_and_saveexec_b64 s[92:93], vcc
        global_store_dword v3, v1, s[18:19]
        s_mov_b64 exec, s[92:93]
        """)
    A.label(L_end)
    A("s_endpgm")
    return hdr + A.text() + kernel_desc(KN, 512, 96, 256)

if __name__ == "__main__":
    import argparse
    p = argparse.ArgumentParser()
    p.add_argument("-o", default="fused.s"); p.add_argument("--cfg", default="{}")
    a_ = p.parse_args()
    open(a_.o, "w").write(gen(json.loads(a_.cfg)))
```
